```python
import torch

def _softmax(x, axis=-1):
    return torch.softmax(x, dim=axis)
def _gelu(x):
    return torch.nn.functional.gelu(x, approximate="tanh")
def _silu(x):
    return torch.nn.functional.silu(x)
def _sigmoid(x):
    return torch.sigmoid(x)
def _layernorm(x, axis=-1, eps=1e-5):
    m = x.mean(dim=axis, keepdim=True)
    v = x.var(dim=axis, keepdim=True, unbiased=False)
    return (x - m) / torch.sqrt(v + eps)
def _scatter_add(tgt, idx, src, axis=0):
    return tgt.clone().index_add_(axis, idx, src)
def _segment_sum(src, seg, n):
    out = torch.zeros((n,) + src.shape[1:], dtype=src.dtype)
    return out.index_add_(0, seg, src)
def _pad(x, pw):
    flat = tuple(v for pair in reversed(pw) for v in pair)
    return torch.nn.functional.pad(x, flat)

kernel_name = 'parallel_sum__ssm_conv_h3__mixer_token_mlp__prompt'

def setup_inputs():

    _w = (lambda a: (lambda t: t.to(torch.bfloat16) if t.is_floating_point() else t)(torch.as_tensor(a)))
    def _A_setup():
        B, S, D = 1, 2048, 1024
        ks = 4
        return {
            "q": _w((lambda *s: torch.randn(*s, dtype=torch.bfloat16) * 0.05)(B, S, D)),
            "k": _w((lambda *s: torch.randn(*s, dtype=torch.bfloat16) * 0.2)(B, S, D)),
            "v": _w((lambda *s: torch.randn(*s, dtype=torch.bfloat16) * 0.2)(B, S, D)),
            "shift_k": _w((lambda *s: torch.randn(*s, dtype=torch.bfloat16) * 0.2)(D, ks) * 0.5),
            "ssm_k": _w((lambda *s: torch.randn(*s, dtype=torch.bfloat16) * 0.2)(D, S) * (1.0 / S ** 0.5)),
            "ssm_D": _w((lambda *s: torch.randn(*s, dtype=torch.bfloat16) * 0.2)(D)),
        }
    _A_in = _A_setup()

    def _B_setup():
        B, S, D, F = 1, 2048, 1024, 3584
        return {
            "x": _w((lambda *s: torch.randn(*s, dtype=torch.bfloat16) * 0.05)(B, S, D)),
            "w1": _w((lambda *s: torch.randn(*s, dtype=torch.bfloat16) * 0.4)(S, F) * (S ** -0.5)),
            "b1": _w((lambda *s: torch.randn(*s, dtype=torch.bfloat16) * 3.2)(F) * 0.02),
            "w2": _w((lambda *s: torch.randn(*s, dtype=torch.bfloat16) * 0.2)(F, S) * (F ** -0.5)),
            "b2": _w((lambda *s: torch.randn(*s, dtype=torch.bfloat16) * 0.4)(S) * 0.02),
        }
    _B_in = _B_setup()

    return {
        "A_q": _A_in["q"],
        "A_k": _A_in["k"],
        "A_v": _A_in["v"],
        "A_shift_k": _A_in["shift_k"],
        "A_ssm_k": _A_in["ssm_k"],
        "A_ssm_D": _A_in["ssm_D"],
        "B_x": _B_in["x"],
        "B_w1": _B_in["w1"],
        "B_b1": _B_in["b1"],
        "B_w2": _B_in["w2"],
        "B_b2": _B_in["b2"],
    }

def reference(A_q, A_k, A_v, A_shift_k, A_ssm_k, A_ssm_D, B_x, B_w1, B_b1, B_w2, B_b2):
    def _A_ref(q, k, v, shift_k, ssm_k, ssm_D):
        B, S, D = q.shape
        ks = shift_k.shape[-1]
        k_pad = _pad(k, ((0, 0), (ks - 1, 0), (0, 0)))
        k_shift = torch.zeros_like(k)
        for t in range(ks):
            k_shift = k_shift + k_pad[:, t:t + S, :] * shift_k[:, ks - 1 - t][None, None, :]
        kv = k_shift * v
        L = 2 * S
        kv_pad = _pad(kv, ((0, 0), (0, S), (0, 0)))
        kf_pad = _pad(ssm_k, ((0, 0), (0, S)))
        kv_f = (lambda x, axes=(-2,-1): torch.fft.rfft2(x.float(), dim=axes))(kv_pad[:, None, :, :], axes=(1, 2))
        kf_f = (lambda x, axes=(-2,-1): torch.fft.rfft2(x.float(), dim=axes))(kf_pad[:, None, :], axes=(1, 2))
        kf_f = (lambda x, *d: x.permute(*d))(kf_f, 1, 2, 0)
        y_f = kv_f * kf_f[None, :, :, :]
        y = (lambda x, s, axes=(-2,-1): torch.fft.irfft2(x, s=s, dim=axes).to(torch.bfloat16))(y_f, (1, L), axes=(1, 2))[:, 0, :S, :]
        y = y + kv * ssm_D[None, None, :]
        return q * y

    def _B_ref(x, w1, b1, w2, b2):
        B, S, D = x.shape
        h = _layernorm(x, axis=-1)
        u = torch.einsum("bsd,sf->bdf", h, w1) + b1
        u = _gelu(u)
        y = torch.einsum("bdf,fs->bds", u, w2) + b2
        return (lambda x, *d: x.permute(*d))(y, 0, 2, 1)

    x = A_q
    xn = _layernorm(x, axis=-1)
    return x + _A_ref(xn, A_k, A_v, A_shift_k, A_ssm_k, A_ssm_D) + _B_ref(xn, B_w1, B_b1, B_w2, B_b2)
```

```python
import sys

S = 2048
D = 1024
F = 3584

WS_H = 0
WS_KV = 4 << 20
WS_Z = 8 << 20
WS_U = 12 << 20
WS_ST = 20 << 20

KA_Q, KA_K, KA_V, KA_SHIFT, KA_SSMK, KA_SSMD, KA_BX, KA_W1, KA_B1, KA_W2, KA_B2, KA_OUT, KA_DBG, KA_WS = [8 * i for i in range(14)]


class Asm:
    def __init__(self):
        self.lines = []

    def __call__(self, s):
        for l in s.strip("\n").split("\n"):
            self.lines.append("    " + l.strip())

    def label(self, l):
        self.lines.append(l + ":")

    def raw(self, s):
        self.lines.append(s)

    def text(self):
        return "\n".join(self.lines) + "\n"


def srd(a, d, p, off, size):
    if off:
        a(f"s_add_u32 s{d}, s{p}, {off:#x}")
        a(f"s_addc_u32 s{d+1}, s{p+1}, 0")
    else:
        a(f"s_mov_b32 s{d}, s{p}")
        a(f"s_mov_b32 s{d+1}, s{p+1}")
    a(f"s_and_b32 s{d+1}, s{d+1}, 0xffff")
    a(f"s_mov_b32 s{d+2}, {size:#x}")
    a(f"s_mov_b32 s{d+3}, 0x20000")


def srd_s(a, d, p, soff, off, size):
    a(f"s_add_u32 s{d}, s{p}, s{soff}")
    a(f"s_addc_u32 s{d+1}, s{p+1}, 0")
    if off:
        a(f"s_add_u32 s{d}, s{d}, {off:#x}")
        a(f"s_addc_u32 s{d+1}, s{d+1}, 0")
    a(f"s_and_b32 s{d+1}, s{d+1}, 0xffff")
    a(f"s_mov_b32 s{d+2}, {size:#x}")
    a(f"s_mov_b32 s{d+3}, 0x20000")


def kernel_head(a, name):
    a.raw(f".globl {name}")
    a.raw(".p2align 8")
    a.raw(f".type {name},@function")
    a.label(name)


def kernel_desc(name, vgpr, sgpr=96):
    acc = (vgpr + 3) // 4 * 4
    return f""".amdhsa_kernel {name}
  .amdhsa_next_free_vgpr {vgpr}
  .amdhsa_next_free_sgpr {sgpr}
  .amdhsa_accum_offset {acc}
  .amdhsa_group_segment_fixed_size 0
  .amdhsa_kernarg_size 112
  .amdhsa_user_sgpr_count 2
  .amdhsa_user_sgpr_kernarg_segment_ptr 1
  .amdhsa_system_sgpr_workgroup_id_x 1
.end_amdhsa_kernel
"""


def wave_sum(a, v, s):
    for sh in (1, 2, 4, 8):
        a("s_nop 1")
        a(f"v_add_f32_dpp v{v}, v{v}, v{v} row_shr:{sh} row_mask:0xf bank_mask:0xf bound_ctrl:0")
    a("s_nop 1")
    a(f"v_add_f32_dpp v{v}, v{v}, v{v} row_bcast:15 row_mask:0xa bank_mask:0xf")
    a("s_nop 1")
    a(f"v_add_f32_dpp v{v}, v{v}, v{v} row_bcast:31 row_mask:0xc bank_mask:0xf")
    a("s_nop 1")
    a(f"v_readlane_b32 s{s}, v{v}, 63")
    a("s_nop 1")


def bf16r1(a, v):
    a(f"v_cvt_pk_bf16_f32 v{v}, v{v}, v{v}")
    a(f"v_lshlrev_b32 v{v}, 16, v{v}")


def gen_prep(a):
    name = "prep_kernel"
    kernel_head(a, name)
    a(f"""
    s_cmp_ge_u32 s2, 512
    s_cbranch_scc1 prep_done
    s_load_dwordx2 s[4:5], s[0:1], {KA_Q}
    s_load_dwordx4 s[8:11], s[0:1], {KA_K}
    s_load_dwordx2 s[12:13], s[0:1], {KA_SHIFT}
    s_load_dwordx2 s[6:7], s[0:1], {KA_WS}
    v_lshrrev_b32 v1, 6, v0
    v_and_b32 v0, 63, v0
    s_nop 0
    v_readfirstlane_b32 s32, v1
    s_waitcnt lgkmcnt(0)
    s_cmp_ge_u32 s2, 256
    s_cbranch_scc1 prep_kv
    """)
    srd(a, 16, 4, 0, S * D * 2)
    srd(a, 20, 6, WS_H, S * D * 2)
    srd(a, 24, 6, WS_ST, S * 8)
    a(f"""
    s_lshl_b32 s33, s2, 3
    s_lshl_b32 s34, s32, 1
    s_add_u32 s33, s33, s34              ; row0
    s_lshl_b32 s34, s33, 11              ; row0 * 2048
    s_add_u32 s35, s34, 2048
    v_lshlrev_b32 v2, 4, v0
    buffer_load_dwordx4 v[4:7], v2, s[16:19], s34 offen
    buffer_load_dwordx4 v[8:11], v2, s[16:19], s34 offen offset:1024
    buffer_load_dwordx4 v[12:15], v2, s[16:19], s35 offen
    buffer_load_dwordx4 v[16:19], v2, s[16:19], s35 offen offset:1024
    v_mov_b32 v60, 0xffff0000
    """)
    X = list(range(20, 36))
    P = list(range(40, 48))
    vS, vMean, vT, vQ, vM, vSD, vR, vT2 = 36, 37, 38, 39, 48, 49, 50, 51

    def ln(store_stats_row):
        a(f"v_add_f32 v{vS}, v{X[0]}, v{X[1]}")
        for i in range(2, 16):
            a(f"v_add_f32 v{vS}, v{vS}, v{X[i]}")
        wave_sum(a, vS, 36)
        a(f"v_mov_b32 v{vMean}, 0x3a800000")
        a(f"v_mul_f32 v{vMean}, s36, v{vMean}")
        a(f"v_mov_b32 v{vQ}, 0")
        for i in range(16):
            a(f"v_sub_f32 v{vT}, v{X[i]}, v{vMean}")
            a(f"v_fmac_f32 v{vQ}, v{vT}, v{vT}")
        wave_sum(a, vQ, 37)
        a(f"v_mov_b32 v{vSD}, 0x3a800000")
        a(f"v_mul_f32 v{vSD}, s37, v{vSD}")
        a(f"v_mov_b32 v{vM}, v{vMean}")
        bf16r1(a, vM)
        bf16r1(a, vSD)
        a(f"v_add_f32 v{vSD}, 0x3727c5ac, v{vSD}")
        bf16r1(a, vSD)
        a(f"v_sqrt_f32 v{vSD}, v{vSD}")
        a("s_nop 0")
        bf16r1(a, vSD)
        a(f"v_rcp_f32 v{vR}, v{vSD}")
        a("s_nop 0")
        for i in range(8):
            x0, x1 = X[2 * i], X[2 * i + 1]
            a(f"v_sub_f32 v{x0}, v{x0}, v{vM}")
            a(f"v_sub_f32 v{x1}, v{x1}, v{vM}")
            a(f"v_cvt_pk_bf16_f32 v{vT}, v{x0}, v{x1}")
            a(f"v_lshlrev_b32 v{x0}, 16, v{vT}")
            a(f"v_and_b32 v{x1}, v60, v{vT}")
            a(f"v_mul_f32 v{x0}, v{x0}, v{vR}")
            a(f"v_mul_f32 v{x1}, v{x1}, v{vR}")
            a(f"v_cvt_pk_bf16_f32 v{P[i]}, v{x0}, v{x1}")
            a(f"v_lshlrev_b32 v{x0}, 16, v{P[i]}")
            a(f"v_and_b32 v{x1}, v60, v{P[i]}")

    for r in range(2):
        a(f"s_waitcnt vmcnt({2 if r == 0 else 3})")
        src = 4 + 8 * r
        for i in range(8):
            a(f"v_lshlrev_b32 v{X[2*i]}, 16, v{src+i}")
            a(f"v_and_b32 v{X[2*i+1]}, v60, v{src+i}")
        ln(True)
        a(f"s_add_u32 s38, s33, {r}")
        a("s_lshl_b32 s38, s38, 3")
        a(f"v_mov_b32 v52, v{vM}")
        a(f"v_mov_b32 v53, v{vSD}")
        a("v_mov_b32 v54, 0")
        a("buffer_store_dwordx2 v[52:53], v54, s[24:27], s38 offen")
        ln(False)
        so = 34 + r
        a(f"buffer_store_dwordx4 v[40:43], v2, s[20:23], s{so} offen")
        a(f"buffer_store_dwordx4 v[44:47], v2, s[20:23], s{so} offen offset:1024")
        a("s_nop 1")
    a("s_endpgm")

    a.label("prep_kv")
    srd(a, 16, 8, 0, S * D * 2)
    srd(a, 20, 10, 0, S * D * 2)
    srd(a, 24, 12, 0, D * 8)
    srd(a, 28, 6, WS_KV, S * D * 2)
    a(f"""
    s_sub_u32 s33, s2, 256
    s_lshr_b32 s34, s33, 3               ; ts
    s_and_b32 s35, s33, 7                ; td
    s_lshl_b32 s36, s34, 6               ; s0
    s_lshl_b32 s37, s32, 4
    s_add_u32 s36, s36, s37              ; srow = s0 + 16 w
    s_lshl_b32 s38, s35, 7               ; d0
    v_lshlrev_b32 v1, 1, v0
    v_add_u32 v1, s38, v1
    v_lshlrev_b32 v2, 1, v1
    s_lshl_b32 s39, s36, 11              ; srow*2048
    v_add_u32 v3, s39, v2
    v_subrev_u32 v4, {3*2048}, v3
    v_lshlrev_b32 v5, 3, v1
    buffer_load_dwordx4 v[8:11], v5, s[24:27], 0 offen
    v_mov_b32 v60, 0xffff0000
    """)
    KR = list(range(64, 83))
    VR = list(range(84, 100))
    for i in range(19):
        a(f"v_add_u32 v6, {i*2048}, v4")
        a(f"buffer_load_dword v{KR[i]}, v6, s[16:19], 0 offen")
    for i in range(16):
        a(f"v_add_u32 v6, {i*2048}, v3")
        a(f"buffer_load_dword v{VR[i]}, v6, s[20:23], 0 offen")
    W = [[12, 13, 14, 15], [16, 17, 18, 19]]
    a("s_waitcnt vmcnt(35)")
    for c in range(2):
        for j in range(4):
            src = 8 + 2 * c + (j >> 1)
            if j & 1:
                a(f"v_and_b32 v{W[c][j]}, v60, v{src}")
            else:
                a(f"v_lshlrev_b32 v{W[c][j]}, 16, v{src}")
    a("s_waitcnt vmcnt(0)")
    def KU(r, c):
        return 20 + 2 * (r % 4) + c
    def unpack_k(r):
        a(f"v_lshlrev_b32 v{KU(r,0)}, 16, v{KR[r]}")
        a(f"v_and_b32 v{KU(r,1)}, v60, v{KR[r]}")
    for r in range(3):
        unpack_k(r)
    OUT = [[100 + i for i in range(16)], [116 + i for i in range(16)]]
    A0, A1, B0, B1, T = 28, 29, 30, 31, 32
    for i in range(16):
        unpack_k(i + 3)
        a(f"v_mul_f32 v{A0}, v{KU(i,0)}, v{W[0][3]}")
        a(f"v_mul_f32 v{A1}, v{KU(i,1)}, v{W[1][3]}")
        a(f"v_cvt_pk_bf16_f32 v{T}, v{A0}, v{A1}")
        a(f"v_lshlrev_b32 v{A0}, 16, v{T}")
        a(f"v_and_b32 v{A1}, v60, v{T}")
        for t in range(1, 4):
            a(f"v_mul_f32 v{B0}, v{KU(i+t,0)}, v{W[0][3-t]}")
            a(f"v_mul_f32 v{B1}, v{KU(i+t,1)}, v{W[1][3-t]}")
            a(f"v_cvt_pk_bf16_f32 v{T}, v{B0}, v{B1}")
            a(f"v_lshlrev_b32 v{B0}, 16, v{T}")
            a(f"v_and_b32 v{B1}, v60, v{T}")
            a(f"v_add_f32 v{A0}, v{A0}, v{B0}")
            a(f"v_add_f32 v{A1}, v{A1}, v{B1}")
            a(f"v_cvt_pk_bf16_f32 v{T}, v{A0}, v{A1}")
            a(f"v_lshlrev_b32 v{A0}, 16, v{T}")
            a(f"v_and_b32 v{A1}, v60, v{T}")
        a(f"v_lshlrev_b32 v{B0}, 16, v{VR[i]}")
        a(f"v_and_b32 v{B1}, v60, v{VR[i]}")
        a(f"v_mul_f32 v{OUT[0][i]}, v{A0}, v{B0}")
        a(f"v_mul_f32 v{OUT[1][i]}, v{A1}, v{B1}")
    a("""
    s_lshr_b32 s40, s36, 5
    s_lshl_b32 s40, s40, 4               ; beta*16
    s_lshr_b32 s41, s36, 3
    s_and_b32 s41, s41, 3
    s_lshl_b32 s41, s41, 10              ; g0*1024
    s_add_u32 s40, s40, s41
    v_lshlrev_b32 v6, 12, v1             ; dch*4096
    v_add_u32 v6, s40, v6
    v_add_u32 v7, 4096, v6
    """)
    for c in range(2):
        for gq in range(2):
            base = 36 + 4 * (2 * c + gq)
            for w in range(4):
                lo = OUT[c][8 * gq + 7 - 2 * w]
                hi = OUT[c][8 * gq + 6 - 2 * w]
                a(f"v_cvt_pk_bf16_f32 v{base+w}, v{lo}, v{hi}")
            a(f"buffer_store_dwordx4 v[{base}:{base+3}], v{6+c}, s[28:31], 0 offen offset:{1024*gq}")
    a.label("prep_done")
    a("s_endpgm")
    return kernel_desc(name, 132)


CONV_CS = 4160
CONV_UB = 8 * CONV_CS
CONV_PL = 1280
CONV_WAVE = CONV_UB + 4 * CONV_PL


def gen_conv(a):
    name = "conv_kernel"
    kernel_head(a, name)
    a(f"""
    s_cmp_ge_u32 s2, 256
    s_cbranch_scc1 conv_done
    s_load_dwordx4 s[4:7], s[0:1], {KA_SSMK}
    s_load_dwordx2 s[8:9], s[0:1], {KA_WS}
    v_lshrrev_b32 v1, 6, v0
    v_and_b32 v0, 63, v0
    s_nop 0
    v_readfirstlane_b32 s32, v1
    s_lshl_b32 s33, s2, 2
    s_nop 2
    s_add_u32 s33, s33, s32              ; channel d
    s_lshl_b32 s34, s33, 12              ; d*4096
    s_mul_i32 s35, s32, {CONV_WAVE}
    s_waitcnt lgkmcnt(0)
    s_lshr_b32 s36, s33, 1
    s_lshl_b32 s36, s36, 2
    s_add_u32 s6, s6, s36
    s_addc_u32 s7, s7, 0
    s_load_dword s37, s[6:7], 0
    """)
    srd_s(a, 16, 4, 34, 0, 4096)
    srd_s(a, 20, 8, 34, WS_KV, 4096)
    srd_s(a, 24, 8, 34, WS_Z, 4096)
    a(f"""
    v_subrev_u32 v2, 4, v0               ; n = lane-4
    v_lshlrev_b32 v3, 4, v2
    v_add_u32 v4, 16, v3
    """)
    for r in range(5):
        a(f"v_add_u32 v5, {1024*r}, v3")
        a(f"v_add_u32 v6, {1024*r}, v4")
        a(f"buffer_load_dwordx4 v[{96+8*r}:{99+8*r}], v5, s[16:19], 0 offen")
        a(f"buffer_load_dwordx4 v[{100+8*r}:{103+8*r}], v6, s[16:19], 0 offen")
    a("v_lshlrev_b32 v7, 4, v0")
    for g in range(4):
        a(f"buffer_load_dwordx4 v[{140+4*g}:{143+4*g}], v7, s[20:23], 0 offen offset:{1024*g}")
    a(f"""
    v_add_u32 v8, s35, v7
    v_mov_b32 v12, 0
    v_mov_b32 v13, 0
    v_mov_b32 v14, 0
    v_mov_b32 v15, 0
    v_lshrrev_b32 v9, 4, v0
    v_mul_u32_u24 v9, {CONV_PL}, v9
    v_and_b32 v10, 15, v0
    v_lshlrev_b32 v10, 4, v10
    v_add3_u32 v9, v9, v10, s35
    ds_write_b128 v9, v[12:15] offset:{CONV_UB}
    """)
    for r in range(5):
        a(f"s_waitcnt vmcnt({4 + 2*(4-r)})")
        if r == 4:
            a("v_cmp_gt_u32 vcc, 3, v0")
            a("s_and_saveexec_b64 s[40:41], vcc")
        e = 96 + 8 * r
        for sg in range(8):
            sh = sg + 1
            if sh % 2 == 0:
                src = e + sh // 2
                if src % 2 == 0:
                    a(f"ds_write_b128 v8, v[{src}:{src+3}] offset:{sg*CONV_CS + 1024*r}")
                else:
                    for w in range(4):
                        a(f"v_mov_b32 v{16+w}, v{src+w}")
                    a(f"ds_write_b128 v8, v[16:19] offset:{sg*CONV_CS + 1024*r}")
            else:
                tb = 20 + 4 * ((sg // 2) & 1)
                for w in range(4):
                    lo = e + (sh - 1) // 2 + w
                    a(f"v_alignbit_b32 v{tb+w}, v{lo+1}, v{lo}, 16")
                a(f"ds_write_b128 v8, v[{tb}:{tb+3}] offset:{sg*CONV_CS + 1024*r}")
        if r == 4:
            a("s_mov_b64 exec, s[40:41]")
    a("s_waitcnt vmcnt(0)")
    for g in range(4):
        a(f"ds_write_b128 v8, v[{140+4*g}:{143+4*g}] offset:{CONV_UB + g*CONV_PL + 256}")
    a(f"""
    v_and_b32 v2, 7, v0
    v_mul_u32_u24 v2, {CONV_CS}, v2
    v_bfe_u32 v3, v0, 3, 1
    v_lshrrev_b32 v4, 4, v0
    v_sub_u32 v3, v3, v4
    v_add_u32 v3, 3, v3
    v_lshlrev_b32 v3, 4, v3
    v_add3_u32 v2, v2, v3, s35           ; A base
    v_mul_u32_u24 v3, {CONV_PL}, v4
    v_and_b32 v5, 15, v0
    v_add_u32 v6, 1, v5
    v_lshlrev_b32 v6, 4, v6
    v_add3_u32 v3, v3, v6, s35
    """)
    ACC = 64
    for i in range(32):
        a(f"v_mov_b32 v{ACC+i}, 0")
    a("s_waitcnt lgkmcnt(0)")

    def tl(m):
        return [t for t in range(4) if 16 * t + 15 >= m]

    def reads(m):
        p = 96 + 24 * (m & 1)
        n = 0
        for bh in range(2):
            a(f"ds_read_b128 v[{p+4*bh}:{p+4*bh+3}], v2 offset:{32*(2*m+bh)}")
            n += 1
        for t in tl(m):
            a(f"ds_read_b128 v[{p+8+4*t}:{p+11+4*t}], v3 offset:{CONV_UB + 16*(16*t-m+15)}")
            n += 1
        return n

    reads(0)
    for m in range(64):
        n = reads(m + 1) if m + 1 < 64 else 0
        a(f"s_waitcnt lgkmcnt({n})")
        p = 96 + 24 * (m & 1)
        for t in tl(m):
            for bh in range(2):
                c = ACC + 4 * (bh * 4 + t)
                a(f"v_mfma_f32_16x16x32_bf16 v[{c}:{c+3}], v[{p+4*bh}:{p+4*bh+3}], v[{p+8+4*t}:{p+11+4*t}], v[{c}:{c+3}]")
    a(f"""
    s_waitcnt lgkmcnt(0)
    s_and_b32 s38, s33, 1
    s_lshl_b32 s38, s38, 4
    s_lshr_b32 s37, s37, s38
    s_lshl_b32 s37, s37, 16
    v_lshrrev_b32 v4, 4, v0              ; g
    v_lshrrev_b32 v6, 1, v4
    v_mul_u32_u24 v6, {CONV_PL}, v6
    v_and_b32 v7, 1, v4
    v_xor_b32 v7, 1, v7
    v_lshlrev_b32 v7, 3, v7
    v_lshlrev_b32 v8, 4, v5
    v_add3_u32 v6, v6, v7, v8
    v_add_u32 v6, s35, v6
    v_lshlrev_b32 v8, 6, v5
    v_lshlrev_b32 v9, 3, v4
    v_add_u32 v8, v8, v9
    v_mov_b32 v60, 0xffff0000
    s_nop 7
    s_nop 7
    """)
    for bh in range(2):
        for t in range(4):
            a(f"ds_read_b64 v[{96+2*(bh*4+t)}:{97+2*(bh*4+t)}], v6 offset:{CONV_UB + bh*2*CONV_PL + 256 + 256*t}")
    a("s_waitcnt lgkmcnt(0)")
    for bh in range(2):
        for t in range(4):
            c = ACC + 4 * (bh * 4 + t)
            kvr = 96 + 2 * (bh * 4 + t)
            a(f"""
            v_and_b32 v10, v60, v{kvr+1}
            v_lshlrev_b32 v11, 16, v{kvr+1}
            v_and_b32 v12, v60, v{kvr}
            v_lshlrev_b32 v13, 16, v{kvr}
            v_mul_f32 v10, s37, v10
            v_mul_f32 v11, s37, v11
            v_mul_f32 v12, s37, v12
            v_mul_f32 v13, s37, v13
            v_cvt_pk_bf16_f32 v14, v10, v11
            v_cvt_pk_bf16_f32 v15, v12, v13
            v_cvt_pk_bf16_f32 v16, v{c}, v{c+1}
            v_cvt_pk_bf16_f32 v17, v{c+2}, v{c+3}
            v_lshlrev_b32 v10, 16, v14
            v_and_b32 v11, v60, v14
            v_lshlrev_b32 v12, 16, v15
            v_and_b32 v13, v60, v15
            v_lshlrev_b32 v18, 16, v16
            v_and_b32 v19, v60, v16
            v_lshlrev_b32 v20, 16, v17
            v_and_b32 v21, v60, v17
            v_add_f32 v10, v10, v18
            v_add_f32 v11, v11, v19
            v_add_f32 v12, v12, v20
            v_add_f32 v13, v13, v21
            v_cvt_pk_bf16_f32 v{kvr}, v10, v11
            v_cvt_pk_bf16_f32 v{kvr+1}, v12, v13
            buffer_store_dwordx2 v[{kvr}:{kvr+1}], v8, s[24:27], 0 offen offset:{1024*t + 32*bh}
            """)
    a.label("conv_done")
    a("s_endpgm")
    return kernel_desc(name, 160)


def gen_gemm(a, which):
    g1 = (which == 1)
    name = "gemm1_kernel" if g1 else "gemm2_kernel"
    NT = 112 if g1 else 64
    K = S if g1 else F
    NST = K // 64
    pitchA = 2048
    pitchB = F * 2 if g1 else S * 2
    BP = 256 if g1 else 128
    SLOT = 16384 + 64 * BP
    NB = 4 if g1 else 2
    DB = 4 if g1 else 2
    DM = 4 + DB
    NS = 4
    kernel_head(a, name)
    a(f"""
    s_cmp_ge_u32 s2, 256
    s_cbranch_scc1 {name}_done
    s_load_dwordx2 s[4:5], s[0:1], {KA_WS}
    s_load_dwordx4 s[8:11], s[0:1], {KA_W1 if g1 else KA_W2}     ; w, b
    s_load_dwordx2 s[12:13], s[0:1], {KA_Q}
    s_load_dwordx2 s[14:15], s[0:1], {KA_OUT}
    v_lshrrev_b32 v1, 6, v0
    v_and_b32 v0, 63, v0
    s_nop 0
    v_readfirstlane_b32 s32, v1          ; wave
    s_and_b32 s33, s2, 7                 ; xcd
    s_lshr_b32 s34, s2, 3                ; idx
    s_and_b32 s35, s33, 1
    s_lshl_b32 s35, s35, 2
    s_and_b32 s36, s34, 3
    s_add_u32 s35, s35, s36              ; mt
    s_lshr_b32 s36, s33, 1
    s_lshl_b32 s36, s36, 3
    s_lshr_b32 s37, s34, 2
    s_add_u32 s36, s36, s37              ; nt
    s_lshl_b32 s35, s35, 7               ; m0
    s_mul_i32 s36, s36, {NT}             ; n0
    s_and_b32 s38, s32, 1                ; mh
    s_lshr_b32 s39, s32, 1               ; nh
    s_waitcnt lgkmcnt(0)
    """)
    if g1:
        srd(a, 16, 4, WS_H, S * D * 2)
        srd(a, 20, 8, 0, S * F * 2)
    else:
        srd(a, 16, 4, WS_U, F * D * 2)
        srd(a, 20, 8, 0, F * S * 2)
    VA = [200, 201, 202, 203]
    VB = [204, 205, 206, 207]
    a(f"""
    v_lshrrev_b32 v2, 4, v0              ; l>>4
    v_and_b32 v3, 15, v0                 ; l&15
    s_lshl_b32 s40, s32, 4               ; 16 w
    s_lshl_b32 s41, s35, 1               ; m0*2
    s_lshl_b32 s42, s36, 1               ; n0*2
    """)
    for j in range(4):
        a(f"""
        v_add_u32 v4, {4*j}, v2
        v_add_u32 v4, s40, v4                ; r
        v_and_b32 v5, 7, v4
        v_lshlrev_b32 v5, 1, v5
        v_xor_b32 v5, v5, v3                 ; u
        v_lshlrev_b32 v6, 11, v4             ; r*2048
        v_lshl_add_u32 v6, v5, 4, v6
        v_add_u32 v6, s41, v6
        v_subrev_u32 v{VA[j]}, {1024*j}, v6
        """)
        if g1:
            a(f"""
            s_movk_i32 s43, {pitchB}
            v_mul_lo_u32 v6, v4, s43
            v_lshl_add_u32 v6, v5, 4, v6
            v_add_u32 v6, s42, v6
            v_subrev_u32 v6, {1024*j}, v6
            v_mov_b32 v7, 0x80000000
            v_cmp_gt_u32 vcc, 14, v5
            s_nop 1
            v_cndmask_b32 v{VB[j]}, v7, v6, vcc
            """)
    if not g1:
        a("""
        v_lshrrev_b32 v8, 3, v0
        v_and_b32 v9, 7, v0
        """)
        for j in range(2):
            a(f"""
            v_add_u32 v4, {8*j}, v8
            v_add_u32 v4, s40, v4                ; r = 16w + 8j + (l>>3)
            v_bfe_u32 v5, v4, 1, 2
            v_lshlrev_b32 v5, 1, v5
            v_xor_b32 v5, v5, v9
            v_lshlrev_b32 v6, 12, v4             ; r*4096
            v_lshl_add_u32 v6, v5, 4, v6
            v_add_u32 v6, s42, v6
            v_subrev_u32 v{VB[j]}, {1024*j}, v6
            """)
    RA = [[208, 209, 210, 211], [212, 213, 214, 215]]
    RB = [[216, 217, 218, 219], [220, 221, 222, 223]]
    a(f"""
    v_bfe_u32 v4, v0, 2, 2
    v_lshl_add_u32 v4, v2, 2, v4         ; row_l
    v_and_b32 v5, 3, v0
    v_lshlrev_b32 v5, 3, v5              ; c*8
    v_lshl_add_u32 v6, v4, 8, v5         ; row_l*256 + c*8
    v_and_b32 v7, 7, v4                  ; x
    s_lshl_b32 s43, s38, 2               ; 4 mh
    """)
    for i in range(4):
        a(f"""
        s_add_u32 s44, s43, {i}
        v_xor_b32 v8, s44, v7
        v_lshl_add_u32 v{RA[0][i]}, v8, 5, v6
        v_add_u32 v{RA[1][i]}, {2*SLOT}, v{RA[0][i]}
        """)
    if g1:
        a("s_lshl_b32 s43, s39, 2")
        for i in range(4):
            a(f"""
            s_add_u32 s44, s43, {i}
            v_xor_b32 v8, s44, v7
            v_lshl_add_u32 v{RB[0][i]}, v8, 5, v6
            v_add_u32 v{RB[1][i]}, {2*SLOT}, v{RB[0][i]}
            """)
    else:
        a(f"""
        v_lshl_add_u32 v6, v4, 7, v5         ; row_l*128 + c*8
        v_bfe_u32 v7, v4, 1, 2
        s_lshl_b32 s43, s39, 1
        """)
        for i in range(2):
            a(f"""
            s_add_u32 s44, s43, {i}
            v_xor_b32 v8, s44, v7
            v_lshl_add_u32 v{RB[0][i]}, v8, 5, v6
            v_add_u32 v{RB[1][i]}, {2*SLOT}, v{RB[0][i]}
            """)
    a(f"""
    s_lshl_b32 s46, s32, 12              ; w*4096
    s_mul_i32 s47, s32, {DB*1024}
    s_add_u32 s47, s47, 16384
    s_mov_b32 s48, 0                     ; A k offset
    s_mov_b32 s49, 0                     ; B k offset
    """)
    ACC = 0 + 64
    NACC = 4 * NB * 4
    for i in range(NACC):
        a(f"v_mov_b32 v{ACC+i}, 0")
    NF = 4 + NB
    FR = [128, 128 + 4 * NF]

    def dma(slot):
        a(f"s_add_u32 m0, s46, {slot*SLOT}")
        a("s_nop 0")
        for j in range(4):
            a(f"buffer_load_dwordx4 v{VA[j]}, s[16:19], s48 offen offset:{1024*j} lds")
        a(f"s_add_u32 m0, s47, {slot*SLOT}")
        a("s_nop 0")
        for j in range(DB):
            a(f"buffer_load_dwordx4 v{VB[j]}, s[20:23], s49 offen offset:{1024*j} lds")
        a(f"s_add_u32 s48, s48, {64*pitchA}")
        a(f"s_add_u32 s49, s49, {64*pitchB}")

    def read_list(slot, kh, fset):
        out = []
        bs = slot >> 1
        so = (slot & 1) * SLOT
        f = FR[fset]
        for i in range(4):
            for hf in range(2):
                out.append(f"ds_read_b64_tr_b16 v[{f+4*i+2*hf}:{f+4*i+2*hf+1}], v{RA[bs][i]} offset:{so + kh*32*256 + hf*16*256}")
        for i in range(NB):
            for hf in range(2):
                out.append(f"ds_read_b64_tr_b16 v[{f+16+4*i+2*hf}:{f+16+4*i+2*hf+1}], v{RB[bs][i]} offset:{so + 16384 + kh*32*BP + hf*16*BP}")
        return out

    def mfma_list(fset):
        out = []
        f = FR[fset]
        for jn in range(NB):
            for i in range(4):
                c = ACC + 4 * (jn * 4 + i)
                out.append(f"v_mfma_f32_16x16x32_bf16 v[{c}:{c+3}], v[{f+4*i}:{f+4*i+3}], v[{f+16+4*jn}:{f+16+4*jn+3}], v[{c}:{c+3}]")
        return out

    def interleave(mf, rd):
        n, m = len(mf), len(rd)
        k = 0
        for i, x in enumerate(mf):
            a(x)
            want = (i + 1) * m // n
            while k < want:
                a(rd[k])
                k += 1
        while k < m:
            a(rd[k])
            k += 1

    def iteration(slot, do_dma, has_next, vm):
        a("s_waitcnt lgkmcnt(0)")
        interleave(mfma_list(0), read_list(slot, 1, 1))
        a("s_waitcnt lgkmcnt(0)")
        if has_next:
            a(f"s_waitcnt vmcnt({vm})")
            a("s_barrier")
        if do_dma:
            dma(slot)
        interleave(mfma_list(1), read_list((slot + 1) % NS, 0, 0) if has_next else [])

    for st in range(NS):
        dma(st)
    a(f"s_waitcnt vmcnt({(NS-1)*DM})")
    a("s_barrier")
    for x in read_list(0, 0, 0):
        a(x)
    nloop = (NST - NS) // NS
    assert (NST - NS) % NS == 0
    a(f"s_mov_b32 s50, {nloop}")
    a.label(f"{name}_loop")
    for sl in range(NS):
        iteration(sl, True, True, (NS - 2) * DM)
    a(f"""
    s_sub_u32 s50, s50, 1
    s_cmp_lg_u32 s50, 0
    s_cbranch_scc1 {name}_loop
    """)
    for sl in range(NS):
        rem = NS - 1 - sl
        iteration(sl, False, rem > 0, max(rem - 1, 0) * DM)
    a("s_nop 7")
    a("s_nop 7")
    a("""
    v_and_b32 v3, 15, v0
    v_lshrrev_b32 v2, 4, v0
    v_mov_b32 v60, 0xffff0000
    """)
    if g1:
        srd(a, 24, 10, 0, F * 2)
        srd(a, 28, 4, WS_U, F * D * 2)
        a(f"""
        s_lshl_b32 s43, s39, 6
        s_add_u32 s43, s43, s36              ; n0 + 64 nh
        v_add_u32 v4, s43, v3                ; f (jn=0)
        v_lshlrev_b32 v5, 1, v4
        """)
        for jn in range(4):
            a(f"buffer_load_ushort v{10+jn}, v5, s[24:27], 0 offen offset:{32*jn}")
        a(f"""
        s_lshl_b32 s44, s38, 6
        s_add_u32 s44, s44, s35              ; m0 + 64 mh
        v_lshl_add_u32 v6, v2, 2, s44        ; d
        v_lshlrev_b32 v6, 1, v6
        v_lshl_add_u32 v6, v4, 11, v6        ; f*2048 + d*2
        s_mov_b32 s52, 0x3dd2d3e8            ; 0.044715*2*sqrt(2/pi)*log2(e)
        s_mov_b32 s53, 0x40135761            ; 2*sqrt(2/pi)*log2(e)
        s_waitcnt vmcnt(0)
        """)
        for jn in range(4):
            if jn == 3:
                a("s_cmp_eq_u32 s39, 1")
                a(f"s_cbranch_scc1 {name}_done")
            a(f"v_lshlrev_b32 v{10+jn}, 16, v{10+jn}")
            a(f"v_add_u32 v7, {32768*jn}, v6")
            for i in range(4):
                c = ACC + 4 * (jn * 4 + i)
                for pr in range(2):
                    x0, x1 = c + 2 * pr, c + 2 * pr + 1
                    a(f"""
                    v_cvt_pk_bf16_f32 v14, v{x0}, v{x1}
                    v_lshlrev_b32 v{x0}, 16, v14
                    v_and_b32 v{x1}, v60, v14
                    v_add_f32 v{x0}, v{x0}, v{10+jn}
                    v_add_f32 v{x1}, v{x1}, v{10+jn}
                    v_cvt_pk_bf16_f32 v14, v{x0}, v{x1}
                    v_lshlrev_b32 v{x0}, 16, v14
                    v_and_b32 v{x1}, v60, v14
                    v_mul_f32 v16, v{x0}, v{x0}
                    v_mul_f32 v17, v{x1}, v{x1}
                    v_mov_b32 v18, s53
                    v_mov_b32 v19, s53
                    v_fmac_f32 v18, s52, v16
                    v_fmac_f32 v19, s52, v17
                    v_mul_f32 v18, v18, v{x0}
                    v_mul_f32 v19, v19, v{x1}
                    v_exp_f32 v18, v18
                    v_exp_f32 v19, v19
                    s_nop 0
                    v_add_f32 v18, 1.0, v18
                    v_add_f32 v19, 1.0, v19
                    v_rcp_f32 v18, v18
                    v_rcp_f32 v19, v19
                    s_nop 0
                    v_fma_f32 v{x0}, -v{x0}, v18, v{x0}
                    v_fma_f32 v{x1}, -v{x1}, v19, v{x1}
                    v_cvt_pk_bf16_f32 v{20+pr}, v{x0}, v{x1}
                    """)
                a(f"buffer_store_dwordx2 v[20:21], v7, s[28:31], 0 offen offset:{32*i}")
                a("s_nop 0")
    else:
        srd(a, 24, 10, 0, S * 2)
        srd(a, 28, 12, 0, S * D * 2)
        srd(a, 52, 4, WS_ST, S * 8)
        srd(a, 56, 4, WS_Z, S * D * 2)
        srd(a, 60, 14, 0, S * D * 2)
        a(f"""
        s_lshl_b32 s43, s39, 5
        s_add_u32 s43, s43, s36              ; n0 + 32 nh
        v_add_u32 v4, s43, v3                ; s (jn=0)
        v_lshlrev_b32 v5, 1, v4
        v_lshlrev_b32 v8, 3, v4
        s_lshl_b32 s44, s38, 6
        s_add_u32 s44, s44, s35              ; m0 + 64 mh
        v_lshl_add_u32 v6, v2, 2, s44        ; d (i=0)
        v_lshlrev_b32 v7, 1, v6
        v_lshl_add_u32 v7, v4, 11, v7        ; s*2048 + d*2
        v_lshl_add_u32 v9, v6, 12, v5        ; d*4096 + s*2
        v_add_u32 v30, {16*2048}, v7         ; jn=1
        """)
        for jn in range(2):
            a(f"buffer_load_ushort v{10+jn}, v5, s[24:27], 0 offen offset:{32*jn}")
            a(f"buffer_load_dwordx2 v[{12+2*jn}:{13+2*jn}], v8, s[52:55], 0 offen offset:{128*jn}")
        XR = 128
        ZR = 144
        for jn in range(2):
            for i in range(4):
                ti = jn * 4 + i
                a(f"buffer_load_dwordx2 v[{XR+2*ti}:{XR+2*ti+1}], v{7 if jn == 0 else 30}, s[28:31], 0 offen offset:{32*i}")
                for r in range(4):
                    a(f"s_mov_b32 s45, {(16*i + r)*4096}")
                    a(f"buffer_load_ushort v{ZR+4*ti+r}, v9, s[56:59], s45 offen offset:{32*jn}")
        a("s_waitcnt vmcnt(0)")
        for jn in range(2):
            a(f"v_lshlrev_b32 v{10+jn}, 16, v{10+jn}")
            a(f"v_rcp_f32 v{13+2*jn}, v{13+2*jn}")
        a("s_nop 0")
        for jn in range(2):
            vb, vm_, vr = 10 + jn, 12 + 2 * jn, 13 + 2 * jn
            for i in range(4):
                ti = jn * 4 + i
                c = ACC + 4 * ti
                for pr in range(2):
                    x0, x1 = c + 2 * pr, c + 2 * pr + 1
                    xr = XR + 2 * ti + pr
                    z0, z1 = ZR + 4 * ti + 2 * pr, ZR + 4 * ti + 2 * pr + 1
                    a(f"""
                    v_cvt_pk_bf16_f32 v16, v{x0}, v{x1}
                    v_lshlrev_b32 v{x0}, 16, v16
                    v_and_b32 v{x1}, v60, v16
                    v_add_f32 v{x0}, v{x0}, v{vb}
                    v_add_f32 v{x1}, v{x1}, v{vb}
                    v_cvt_pk_bf16_f32 v16, v{x0}, v{x1}
                    v_lshlrev_b32 v{x0}, 16, v16
                    v_and_b32 v{x1}, v60, v16
                    v_lshlrev_b32 v18, 16, v{xr}
                    v_and_b32 v19, v60, v{xr}           ; x
                    v_sub_f32 v20, v18, v{vm_}
                    v_sub_f32 v21, v19, v{vm_}
                    v_cvt_pk_bf16_f32 v16, v20, v21
                    v_lshlrev_b32 v20, 16, v16
                    v_and_b32 v21, v60, v16
                    v_mul_f32 v20, v20, v{vr}
                    v_mul_f32 v21, v21, v{vr}
                    v_cvt_pk_bf16_f32 v16, v20, v21
                    v_lshlrev_b32 v20, 16, v16
                    v_and_b32 v21, v60, v16            ; xn
                    v_lshlrev_b32 v{z0}, 16, v{z0}
                    v_lshlrev_b32 v{z1}, 16, v{z1}
                    v_mul_f32 v20, v20, v{z0}
                    v_mul_f32 v21, v21, v{z1}
                    v_cvt_pk_bf16_f32 v16, v20, v21
                    v_lshlrev_b32 v20, 16, v16
                    v_and_b32 v21, v60, v16            ; A branch
                    v_add_f32 v20, v18, v20
                    v_add_f32 v21, v19, v21
                    v_cvt_pk_bf16_f32 v16, v20, v21
                    v_lshlrev_b32 v20, 16, v16
                    v_and_b32 v21, v60, v16
                    v_add_f32 v20, v20, v{x0}
                    v_add_f32 v21, v21, v{x1}
                    v_cvt_pk_bf16_f32 v{22+pr}, v20, v21
                    """)
                a(f"buffer_store_dwordx2 v[22:23], v{7 if jn == 0 else 30}, s[60:63], 0 offen offset:{32*i}")
                a("s_nop 0")
    a.label(f"{name}_done")
    a("s_endpgm")
    return kernel_desc(name, 224), NS * SLOT


def main():
    a = Asm()
    descs = []
    descs.append(gen_prep(a))
    descs.append(gen_conv(a))
    d1, lds1 = gen_gemm(a, 1)
    descs.append(d1)
    d2, lds2 = gen_gemm(a, 2)
    descs.append(d2)
    head = f"""; generated by gen/gen.py -- 4 launches: prep (layernorms, shift conv * v), long conv (Toeplitz MFMA), GEMM1+gelu, GEMM2+combine
; @launch kernel=prep_kernel grid=(512,1,1) block=(256,1,1) lds=0
; @launch kernel=conv_kernel grid=(256,1,1) block=(256,1,1) lds={4*CONV_WAVE}
; @launch kernel=gemm1_kernel grid=(256,1,1) block=(256,1,1) lds={lds1}
; @launch kernel=gemm2_kernel grid=(256,1,1) block=(256,1,1) lds={lds2}
.amdgcn_target "amdgcn-amd-amdhsa--gfx950"
.text
"""
    out = head + a.text() + '.section .rodata,"a"\n' + "".join(".p2align 6\n" + d for d in descs)
    path = sys.argv[1] if len(sys.argv) > 1 else "parallel_sum__ssm_conv_h3__mixer_token_mlp__prompt.s"
    open(path, "w").write(out)
    print("wrote", path, len(out), "bytes")


if __name__ == "__main__":
    main()
```
